```python
import torch

def _softmax(x, axis=-1):
    return torch.softmax(x, dim=axis)
def _gelu(x):
    return torch.nn.functional.gelu(x, approximate="tanh")
def _silu(x):
    return torch.nn.functional.silu(x)
def _sigmoid(x):
    return torch.sigmoid(x)
def _layernorm(x, axis=-1, eps=1e-5):
    m = x.mean(dim=axis, keepdim=True)
    v = x.var(dim=axis, keepdim=True, unbiased=False)
    return (x - m) / torch.sqrt(v + eps)
def _scatter_add(tgt, idx, src, axis=0):
    return tgt.clone().index_add_(axis, idx, src)
def _segment_sum(src, seg, n):
    out = torch.zeros((n,) + src.shape[1:], dtype=src.dtype)
    return out.index_add_(0, seg, src)
def _pad(x, pw):
    flat = tuple(v for pair in reversed(pw) for v in pair)
    return torch.nn.functional.pad(x, flat)

kernel_name = 'concat_heads__mha_block_cached__gqa_block_cached__near_ridge'

def setup_inputs():

    _w = (lambda a: (lambda t: t.to(torch.bfloat16) if t.is_floating_point() else t)(torch.as_tensor(a)))
    def _A_setup():
        B, Sq, D = 16, 240, 448
        H, Sk, Dh = 16, 512, 256
        return {
            "x": _w((lambda *s: torch.randn(*s, dtype=torch.bfloat16) * 0.8)(B, Sq, D)),
            "k_cache": _w((lambda *s: torch.randn(*s, dtype=torch.bfloat16) * 0.8)(B, H, Sk, Dh)),
            "v_cache": _w((lambda *s: torch.randn(*s, dtype=torch.bfloat16) * 0.05)(B, H, Sk, Dh)),
            "wq": _w((lambda *s: torch.randn(*s, dtype=torch.bfloat16) * 0.8)(D, H * Dh) * (D ** -0.5)),
            "wo": _w((lambda *s: torch.randn(*s, dtype=torch.bfloat16) * 0.05)(H * Dh, D) * ((H * Dh) ** -0.5)),
        }
    _A_in = _A_setup()

    def _B_setup():
        B, Sq, D = 16, 240, 448
        Hq, Hkv, Sk, Dh = 16, 16, 512, 256
        assert Hq % Hkv == 0, (Hq, Hkv)
        return {
            "x": _w((lambda *s: torch.randn(*s, dtype=torch.bfloat16) * 0.8)(B, Sq, D)),
            "k_cache": _w((lambda *s: torch.randn(*s, dtype=torch.bfloat16) * 0.8)(B, Hkv, Sk, Dh)),
            "v_cache": _w((lambda *s: torch.randn(*s, dtype=torch.bfloat16) * 0.05)(B, Hkv, Sk, Dh)),
            "wq": _w((lambda *s: torch.randn(*s, dtype=torch.bfloat16) * 0.8)(D, Hq * Dh) * (D ** -0.5)),
            "wo": _w((lambda *s: torch.randn(*s, dtype=torch.bfloat16) * 0.05)(Hq * Dh, D) * ((Hq * Dh) ** -0.5)),
        }
    _B_in = _B_setup()

    return {
        "A_x": _A_in["x"],
        "A_k_cache": _A_in["k_cache"],
        "A_v_cache": _A_in["v_cache"],
        "A_wq": _A_in["wq"],
        "A_wo": _A_in["wo"],
        "B_x": _B_in["x"],
        "B_k_cache": _B_in["k_cache"],
        "B_v_cache": _B_in["v_cache"],
        "B_wq": _B_in["wq"],
        "B_wo": _B_in["wo"],
    }

def reference(A_x, A_k_cache, A_v_cache, A_wq, A_wo, B_x, B_k_cache, B_v_cache, B_wq, B_wo):
    def _A_ref(x, k_cache, v_cache, wq, wo):
        B, Sq, D = x.shape
        H, Dh = 16, 256
        q = (lambda x, *d: x.permute(*d))((x @ wq).reshape(B, Sq, H, Dh), 0, 2, 1, 3)
        scores = torch.einsum("bhqd,bhkd->bhqk", q, k_cache) * (Dh ** -0.5)
        p = _softmax(scores, axis=-1)
        o = torch.einsum("bhqk,bhkd->bhqd", p, v_cache)
        return (lambda x, *d: x.permute(*d))(o, 0, 2, 1, 3).reshape(B, Sq, H * Dh) @ wo

    def _B_ref(x, k_cache, v_cache, wq, wo):
        B, Sq, D = x.shape
        Hq, Dh = 16, 256
        Hkv = k_cache.shape[1]
        rep = Hq // Hkv
        q = (lambda x, *d: x.permute(*d))((x @ wq).reshape(B, Sq, Hq, Dh), 0, 2, 1, 3)
        k = (lambda x, n, axis: torch.repeat_interleave(x, n, dim=axis))(k_cache, rep, axis=1)
        v = (lambda x, n, axis: torch.repeat_interleave(x, n, dim=axis))(v_cache, rep, axis=1)
        scores = torch.einsum("bhqd,bhkd->bhqk", q, k) * (Dh ** -0.5)
        p = _softmax(scores, axis=-1)
        o = torch.einsum("bhqk,bhkd->bhqd", p, v)
        return (lambda x, *d: x.permute(*d))(o, 0, 2, 1, 3).reshape(B, Sq, Hq * Dh) @ wo

    a = _A_ref(A_x, A_k_cache, A_v_cache, A_wq, A_wo)
    b = _B_ref(B_x, B_k_cache, B_v_cache, B_wq, B_wo)
    return torch.concatenate([a, b], axis=-1)
```

```python
import heapq

COST = {'trans': 2, 'perm': 2}
VALU = ('valu', 'trans', 'perm')
VMEM = ('dma', 'vld', 'vst')
LDS = ('ds', 'dsw')
DS_LAT_GAPS = 7.0
DS_LAT_CYC = 110


def vr(base, n=1, f='v'):
    return [f'{f}{base + i}' for i in range(n)]


def ar(base, n=1):
    return vr(base, n, 'a')


class I:
    __slots__ = ('text', 'rd', 'wr', 'kind', 'cost', 'rel', 'dl', 'crd', 'preds', 'succs', 'idx', 'pos',
                 'mi', 'covers', 'tag', 'npend', 'srcw', 't', 'fill', 'post')

    def __init__(self, text, rd=(), wr=(), kind='valu', rel=None, dl=None, crd=(), tag=None):
        self.text = text
        self.rd = list(rd)
        self.wr = list(wr)
        self.kind = kind
        self.cost = COST.get(kind, 1)
        self.rel = rel
        self.dl = dl
        self.crd = list(crd)
        self.preds = {}
        self.succs = []
        self.idx = None
        self.pos = None
        self.mi = None
        self.covers = []
        self.tag = tag
        self.srcw = {}
        self.t = None
        self.fill = None
        self.post = None


def hazard(p, c, reg, dep):
    pk, ck = p.kind, c.kind
    if dep in ('raw', 'waw') and pk == 'mfma':
        if ck == 'mfma':
            if dep == 'raw' and reg in c.crd:
                return 0 if c.crd == p.wr else 6
            if dep == 'raw':
                return 8
            return 0 if c.wr == p.wr else 6
        if ck in ('lgw', 'vmw', 'br'):
            return 0
        return 8
    if dep == 'raw' and pk in VALU:
        if ck == 'mfma':
            return 2
        if ck == 'perm':
            return 2
        if pk == 'trans' and ck in ('valu', 'vst', 'dsw'):
            return 1
        if reg == 'vcc' and ck == 'br':
            return 1
        return 0
    if dep == 'war' and pk == 'mfma' and reg in p.crd and ck in VALU:
        return 3
    if dep == 'war' and pk == 'vst' and reg[0] in 'va':
        return 2
    if dep == 'raw' and pk == 'salu' and reg == 'm0':
        return 1
    return 0


class Prog:
    def __init__(self):
        self.ins = []
        self.lastw = {}
        self.realw = {}
        self.readers = {}
        self.nm = 0

    def dep(self, p, c, d=0):
        if p is c:
            return
        if p not in c.preds:
            c.preds[p] = d
            p.succs.append(c)
        elif d > c.preds[p]:
            c.preds[p] = d

    def add(self, ins, after=()):
        ins.idx = len(self.ins)
        self.ins.append(ins)
        if ins.kind == 'mfma':
            ins.mi = self.nm
            self.nm += 1
        for r in ins.rd:
            w = self.lastw.get(r)
            if w is not None:
                self.dep(w, ins, hazard(w, ins, r, 'raw'))
            ins.srcw[r] = self.realw.get(r)
        for r in ins.wr:
            w = self.lastw.get(r)
            if w is not None:
                self.dep(w, ins, hazard(w, ins, r, 'waw'))
            for q in self.readers.get(r, ()):
                self.dep(q, ins, hazard(q, ins, r, 'war'))
        for r in ins.rd:
            self.readers.setdefault(r, []).append(ins)
        for r in ins.wr:
            self.lastw[r] = ins
            self.readers[r] = []
            if ins.kind not in ('lgw', 'vmw', 'br'):
                self.realw[r] = ins
        for p in after:
            self.dep(p, ins, 0)
        return ins

    def deadlines(self):
        order = []
        indeg = {i: len(i.preds) for i in self.ins}
        mf = [i for i in self.ins if i.kind == 'mfma']
        stack = [i for i in self.ins if indeg[i] == 0]
        while stack:
            x = stack.pop()
            order.append(x)
            for s in x.succs:
                indeg[s] -= 1
                if indeg[s] == 0:
                    stack.append(s)
        assert len(order) == len(self.ins), "dependence cycle"
        big = float(self.nm + 1000)
        for x in reversed(order):
            if x.kind == 'mfma':
                x.dl = float(x.mi)
                continue
            d = big if x.dl is None else float(x.dl)
            for s in x.succs:
                h = s.preds[x]
                if s.kind == 'mfma':
                    c = s.mi - 1 - h / 2.5
                elif x.kind == 'ds' and s.kind == 'lgw':
                    c = s.dl - DS_LAT_GAPS
                else:
                    c = s.dl - 0.5 * s.cost - h / 2.5
                if c < d:
                    d = c
            x.dl = d
        return mf

    def schedule(self, vm_space=2, verbose=True):
        mf = self.deadlines()
        out = []
        for i in self.ins:
            i.npend = len(i.preds)
        avail = []
        for i in self.ins:
            if i.kind != 'mfma' and i.npend == 0:
                avail.append(i)
        state = {'t': 0, 'mt': -16, 'lastvm': -99}
        self.over = {}
        nleft = [sum(1 for i in self.ins if i.kind != 'mfma')]

        def dist_ok(c):
            n = len(out)
            for p, h in c.preds.items():
                if h and n - p.pos - 1 < h:
                    return False
            return True

        def emit(x, gap):
            x.pos = len(out)
            out.append(x)
            if x.kind == 'mfma':
                t = max(state['t'], state['mt'] + 16)
                x.t = t
                state['mt'] = t
                state['t'] = t + 8
            else:
                t = state['t']
                if x.kind == 'lgw':
                    for p in x.preds:
                        if p.kind == 'ds':
                            t = max(t, p.t + DS_LAT_CYC)
                x.t = t
                state['t'] = t + 4 * x.cost
                if x.kind != 'nop':
                    nleft[0] -= 1
                if x.kind in VMEM:
                    state['lastvm'] = gap
            for s in x.succs:
                s.npend -= 1
                if s.npend == 0 and s.kind != 'mfma':
                    avail.append(s)

        def soft_ready(x):
            if x.kind == 'lgw':
                for p in x.preds:
                    if p.kind == 'ds' and p.t + DS_LAT_CYC > state['t']:
                        return False
            return True

        for k in range(len(mf) + 1):
            m = mf[k] if k < len(mf) else None
            gap = k - 1
            budget = 2 if k > 0 else 0
            while True:
                need = (m.npend > 0 or not dist_ok(m)) if m is not None else nleft[0] > 0
                cand = [x for x in avail if (x.rel is None or x.rel <= gap or m is None) and dist_ok(x)]
                cand.sort(key=lambda x: (x.dl, x.idx))
                pick = None
                if budget > 0:
                    c2 = [x for x in cand if x.cost <= budget and
                          not (x.kind in VMEM and gap - state['lastvm'] < vm_space and x.dl > gap + 1)]
                    if c2:
                        pick = c2[0]
                        if budget == 2 and pick.cost == 1 and pick.dl > gap + 1.5:
                            ones = [x for x in c2 if x.cost == 1]
                            twos = [x for x in c2 if x.cost == 2]
                            if len(ones) == 1 and twos and not any(s.npend == 1 and s.cost == 1 and s.kind != 'mfma'
                                                                   and s.preds[pick] == 0 for s in pick.succs):
                                pick = twos[0]
                if pick is None and need:
                    if cand:
                        urgent = [x for x in cand if x.dl <= gap + 0.01] or cand
                        sr = [x for x in urgent if soft_ready(x)]
                        if not sr:
                            sr = [x for x in cand if soft_ready(x)] or urgent
                        pick = sr[0]
                    else:
                        blocked = [x for x in avail if not (x.rel is None or x.rel <= gap or m is None)]
                        waiting = [x for x in avail if x not in blocked]
                        if not waiting and m is not None and m.npend > 0:
                            raise RuntimeError(f"stuck before mfma {k}: {m.text}; blocked: "
                                               + "; ".join(f"{x.text} rel={x.rel}" for x in blocked[:8]))
                        nop = I('s_nop 0', kind='nop')
                        emit(nop, gap)
                        budget -= 1
                        if budget < 0:
                            self.over[k // 64] = self.over.get(k // 64, 0) + 1
                        continue
                if pick is None:
                    break
                avail.remove(pick)
                emit(pick, gap)
                budget -= pick.cost
                if budget < 0:
                    self.over[k // 64] = self.over.get(k // 64, 0) + min(pick.cost, -budget)
            if m is not None:
                emit(m, gap)
        self.out = out
        self.tend = state['t']
        return out

    def resolve_waits(self):
        lg, vm = [], []
        for x in self.out:
            if x.kind in LDS:
                lg.append(x)
            elif x.kind in VMEM:
                vm.append(x)
            elif x.kind in ('lgw', 'vmw'):
                q = lg if x.kind == 'lgw' else vm
                kinds = LDS if x.kind == 'lgw' else VMEM
                need = [p for p in list(x.preds) + x.covers if p.kind in kinds]
                last = max(p.pos for p in need)
                n = sum(1 for p in q if p.pos > last)
                lim = 14 if x.kind == 'lgw' else 62
                n = min(n, lim)
                x.text = f"s_waitcnt {'lgkmcnt' if x.kind == 'lgw' else 'vmcnt'}({n})"
                x.tag = n
                del q[:max(0, len(q) - n)]

    def verify(self):
        lastw = {}
        hist_w = {}
        hist_r = {}
        pend = {}
        lg, vm = [], []
        done = set()
        maxlg = maxvm = 0
        for n, x in enumerate(self.out):
            if x.kind == 'nop':
                continue
            if x.kind in ('lgw', 'vmw'):
                q = lg if x.kind == 'lgw' else vm
                k = max(0, len(q) - x.tag)
                for p in q[:k]:
                    done.add(p)
                    for r in p.wr:
                        if pend.get(r) is p:
                            del pend[r]
                del q[:k]
                continue
            if x.kind == 'bar':
                for p in x.covers:
                    assert p in done, f"barrier at {n}: not complete: {p.text}"
            real_wr = [] if x.kind == 'br' else x.wr
            for r in x.rd:
                assert lastw.get(r) is x.srcw[r], f"dataflow mismatch at {n}: {x.text} reg {r}"
                assert r not in pend, f"read of pending load at {n}: {x.text} reg {r}"
                w = lastw.get(r)
                if w is not None:
                    h = hazard(w, x, r, 'raw')
                    assert n - w.pos - 1 >= h, f"raw hazard {w.text} -> {x.text}"
            for r in real_wr:
                assert r not in pend, f"write over pending load at {n}: {x.text} reg {r}"
                w = lastw.get(r)
                if w is not None:
                    h = hazard(w, x, r, 'waw')
                    assert n - w.pos - 1 >= h, f"waw hazard {w.text} -> {x.text}"
                for q in hist_r.get(r, ()):
                    h = hazard(q, x, r, 'war')
                    assert q is x or n - q.pos - 1 >= h, f"war hazard {q.text} -> {x.text}"
            for r in x.rd:
                hist_r.setdefault(r, []).append(x)
            for r in real_wr:
                lastw[r] = x
                hist_r[r] = []
            if x.kind in LDS:
                lg.append(x)
                maxlg = max(maxlg, len(lg))
            if x.kind in VMEM:
                vm.append(x)
                maxvm = max(maxvm, len(vm))
            if x.kind in ('ds', 'vld'):
                for r in x.wr:
                    pend[r] = x
            for p in x.preds:
                assert p.pos < n
        return maxlg, maxvm

    def text(self):
        L = []
        for x in self.out:
            L.append(x.text)
            if x.post:
                L.append(x.post)
        return L
```

```python
import sys
from sched import I, Prog, vr, ar

NAME = "concat_heads__mha_block_cached__gqa_block_cached__near_ridge"
SLOT = 16896
PIECE = 1056
RING = 8
WSCU = 360448
PART0 = 131072
SCALE = 0x3db8aa3b
THR = 0x44800000

V_Q3, V_K, V_T, V_X = 0, 1, 3, 5
V_OKV, V_OW, V_OWH, V_OX, V_OWO = 7, 8, 9, 10, 11
V_L, V_TS, V_TMP, V_FR = 12, 16, 20, 32
V_NM, V_P, V_S, V_QF = 64, 80, 96, 128
XA, XB, STG = 64, 192, 128
V_ACC = 64
S_K, S_V, S_W, S_X, S_WO, S_WS = 8, 24, 40, 56, 72, 88
S_WB, S_OFF, S_OFF2, S_THR, S_SC, S_RK, S_RA = 92, 93, 94, 95, 96, 97, 98

MACROS = r""".macro MA d,a,b
v_mfma_f32_16x16x32_bf16 a[\d:\d+3], v[\a:\a+3], v[\b:\b+3], a[\d:\d+3]
.endm
.macro MA0 d,a,b
v_mfma_f32_16x16x32_bf16 a[\d:\d+3], v[\a:\a+3], v[\b:\b+3], 0
.endm
.macro MV d,a,b
v_mfma_f32_16x16x32_bf16 v[\d:\d+3], v[\a:\a+3], v[\b:\b+3], v[\d:\d+3]
.endm
.macro MV0 d,a,b
v_mfma_f32_16x16x32_bf16 v[\d:\d+3], v[\a:\a+3], v[\b:\b+3], 0
.endm
.macro MC d,a,b,c
v_mfma_f32_16x16x32_bf16 v[\d:\d+3], v[\a:\a+3], v[\b:\b+3], v[\c:\c+3]
.endm
.macro MB d,a,b
v_mfma_f32_16x16x32_bf16 v[\d:\d+3], v[\a:\a+3], a[\b:\b+3], v[\d:\d+3]
.endm
.macro MB0 d,a,b
v_mfma_f32_16x16x32_bf16 v[\d:\d+3], v[\a:\a+3], a[\b:\b+3], 0
.endm
.macro TR d,a,o
ds_read_b64_tr_b16 v[\d:\d+1], v[\a] offset:\o
.endm
.macro RD d,a,o
ds_read_b128 v[\d:\d+3], v[\a] offset:\o
.endm
.macro AR d,a
v_accvgpr_read_b32 v[\d], a[\a]
.endm
.macro CV d,a
v_cvt_pk_bf16_f32 v[\d], v[\a], v[\a+1]
.endm
.macro EX d
v_exp_f32 v[\d], v[\d]
.endm
.macro AD d,a,b
v_add_f32 v[\d], v[\a], v[\b]
.endm
.macro DL v,s,o
buffer_load_dwordx4 v[\v], s[\s:\s+3], s93 offen offset:\o lds
.endm
.macro DN v,s,o
buffer_load_dwordx4 v[\v], s[\s:\s+3], s93 offen offset:\o nt lds
.endm
"""


class Fill:
    def __init__(self, kind, srd, voff, soff, first, last, nt=False):
        self.kind, self.srd, self.voff, self.soff = kind, srd, voff, soff
        self.first, self.last, self.nt = first, last, nt
        self.reads = []
        self.dmas = []
        self.en = self.rl = None
        self.pos = None


class Gen:
    def __init__(self, opt):
        self.o = opt
        self.p = Prog()
        self.nfrag = 0
        self.ntmp = 0
        self.stubs = []
        self.steps = []
        self.plan()

    def plan(self):
        steps, fills, bars = [], [], [-1]
        self.xf = {}
        blocks = [(0, 4), (128, 4), (256, 2), (320, 4)]
        for un in range(2):
            q0 = len(steps)
            n = q0
            for b, (d0, ns) in enumerate(blocks):
                for p in range(ns):
                    if ns == 4:
                        f = Fill('W', S_W, V_OW, d0 * 8192 + un * 512 + p * 128, n, n)
                    else:
                        f = Fill('W', S_W, V_OWH, d0 * 8192 + un * 512 + p * 256, n, n)
                    fills.append(f)
                    steps.append(('QP', un, b, p, f))
                    bars.append(n)
                    n += 1
            xuse = {0: [q0 - 1, q0 - 1, q0, q0] if un else [q0] * 4, 1: [q0 + 1, q0 + 2, q0 + 3, q0 + 4], 2: [q0 + 5, q0 + 6],
                    3: [q0 + 8, q0 + 9, q0 + 9, q0 + 10]}
            for b, (d0, ns) in enumerate(blocks):
                for k in range(ns):
                    c, a = k // 2, k % 2
                    u = xuse[b][k]
                    f = Fill('X', S_X, V_OX, a * 32 * 896 + d0 * 2 + c * 128, u, u - 1)
                    f.prio = -1
                    fills.append(f)
                    self.xf[(un, b, c, a)] = f
            order = [('QK', 0)]
            for i in range(1, 16):
                order += [('QK', i), ('PV', i - 1)]
            order.append(('PV', 15))
            for kind, i in order:
                if kind == 'QK':
                    f = Fill('K', S_K, V_OKV, un * 262144 + i * 16384, n, n + 1 if i else n, nt=True)
                    bars.append(n)
                else:
                    f = Fill('V', S_V, V_OKV, un * 262144 + i * 16384, n, n, nt=True)
                    if i >= 14:
                        bars.append(n)
                fills.append(f)
                steps.append((kind, un, i, None, f))
                n += 1
        for p in range(7):
            for k, (h, a) in enumerate(((1, 0), (1, 1), (0, 0), (0, 1))):
                f = Fill('O', S_WO, V_OWO, (h * 256 + a * 128) * 896 + p * 128, n, n)
                fills.append(f)
                steps.append(('OP', p, h, a, f))
                bars.append(n)
                n += 1
        self.steps = steps
        bars = sorted(set(bars))
        self.barsteps = bars
        for f in fills:
            f.en = max(b for b in bars if b <= f.first - 1)
            later = [b for b in bars if b >= f.last + 1]
            f.rl = min(later) if later else None
        fills.sort(key=lambda f: (f.en, f.first, getattr(f, 'prio', 0)))
        for k, f in enumerate(fills):
            f.pos = k % RING
            f.seq = k
        self.fills = fills

    def add(self, *a, after=(), **k):
        return self.p.add(I(*a, **k), after)

    def lds(self, f, base, imm):
        return base + f.pos // 4, (f.pos % 4) * SLOT + imm

    def build_dma(self):
        gb = self.o.get('gbar', 41)
        self.bar = {}
        self.vmw = {}
        for b in self.barsteps:
            en = [f for f in self.fills if f.en == b]
            rl = [f for f in self.fills if f.rl == b and f.seq + RING < len(self.fills)]
            if not en and not rl:
                continue
            g = b * 64 + gb if b >= 0 else -1
            w = None
            if en:
                w = self.add('', kind='vmw', rel=g, dl=g)
                self.vmw[b] = w
            self.bar[b] = self.add('s_barrier', kind='bar', rel=g, dl=g + 0.5, after=[w] if w else [])
        keys = sorted(self.bar)
        for a, b in zip(keys, keys[1:]):
            self.p.dep(self.bar[a], self.vmw.get(b, self.bar[b]))
        for f in self.fills:
            aft = []
            dl = None
            if f.seq >= RING:
                prev = self.fills[f.seq - RING]
                assert prev.rl < f.en, (prev.kind, prev.rl, f.kind, f.en, f.seq)
                aft = [self.bar[prev.rl]]
                dl = prev.rl * 64 + gb + self.o.get('dma_dl', 40)
            else:
                dl = -100
            self.add(f's_add_u32 m0, s{S_WB}, {f.pos * SLOT}', wr=['m0'], kind='salu')
            self.add(f's_mov_b32 s{S_OFF}, {f.soff}', wr=[f's{S_OFF}'], kind='salu')
            for j in range(4):
                d = self.add(f"{'DN' if f.nt else 'DL'} {f.voff},{f.srd + 4 * j},{PIECE * j}",
                             rd=['m0', f's{S_OFF}', 'dmaq'], wr=['dmaq'], kind='dma', after=aft, dl=dl)
                f.dmas.append(d)
                self.p.dep(d, self.vmw[f.en])

    def finish_protocol(self):
        for f in self.fills:
            if f.seq + RING < len(self.fills):
                self.bar[f.rl].covers += f.reads
            self.bar[f.en].covers += f.dmas

    def frag(self):
        r = V_FR + 4 * (self.nfrag % 8)
        self.nfrag += 1
        return r

    def rd128(self, f, dst, areg, imm, **k):
        a, o = self.lds(f, areg, imm)
        x = self.add(f'RD {dst},{a},{o}', wr=vr(dst, 4), kind='ds', after=[self.bar[f.en]], **k)
        f.reads.append(x)

    def rdtr(self, f, dst, imm0, imm1):
        for u, imm in enumerate((imm0, imm1)):
            a, o = self.lds(f, V_T, imm)
            x = self.add(f'TR {dst + 2 * u},{a},{o}', wr=vr(dst + 2 * u, 2), kind='ds', after=[self.bar[f.en]])
            f.reads.append(x)

    def lgwait(self, regs):
        g = self.p.nm - 1
        return self.add('', rd=regs, wr=regs, kind='lgw', rel=g, dl=g)

    def mfma(self, op, d, a, b, c=None, after=()):
        df = 'a' if op in ('MA', 'MA0') else 'v'
        bf = 'a' if op in ('MB', 'MB0') else 'v'
        D = vr(d, 4, df)
        C = [] if op.endswith('0') else (vr(c, 4) if op == 'MC' else D)
        t = f'{op} {d},{a},{b}' + (f',{c}' if op == 'MC' else '')
        return self.add(t, rd=vr(a, 4) + vr(b, 4, bf) + C, wr=D, crd=C, kind='mfma', after=after)

    def tmp4(self):
        r = V_TMP + 4 * (self.ntmp % 3)
        self.ntmp += 1
        return r

    @staticmethod
    def acc(dt, qt):
        return 16 * dt + 4 * qt

    def convert(self, dt, qt, dst, mul):
        t = self.tmp4()
        a = self.acc(dt, qt)
        for r in range(4):
            self.add(f'AR {t + r},{a + r}', rd=ar(a + r), wr=vr(t + r))
        for r in range(4):
            self.add(f'v_mul_f32 v{t + r}, {mul}, v{t + r}', rd=vr(t + r) + ([mul] if mul[0] == 'v' else []), wr=vr(t + r))
        for k in range(2):
            self.add(f'CV {dst + k},{t + 2 * k}', rd=vr(t + 2 * k, 2), wr=vr(dst + k))

    def xreads(self, un, b):
        base = XB if b % 2 == 0 else XA
        regs = []
        for c in range(2 if b != 2 else 1):
            for a in range(2):
                f = self.xf[(un, b, c, a)]
                for q in range(2):
                    for t in range(2):
                        dst = base + 16 * (2 * c + t) + 4 * (2 * a + q)
                        self.rd128(f, dst, V_X, q * 512 + 64 * t, dl=f.first * 64 + 20)
                        regs += vr(dst, 4)
        return regs

    def step_qp(self, un, b, p, f):
        xb = XB if b % 2 == 0 else XA
        extra = []
        if p == 0:
            if b == 0 and un == 0:
                self.xpend = self.xreads(0, 0)
            extra = self.xpend
        if b != 2:
            groups = [[(4 * p + nt, s, (2 * s) * 128 + 32 * nt) for s in range(4)] for nt in range(4)]
        else:
            groups = [[(4 * (2 * p + pp) + nt, s, (4 * pp + 2 * s) * 128 + 32 * nt) for nt in (n2, n2 + 1) for s in range(2)]
                      for pp in range(2) for n2 in (0, 2)]
        for gi, g in enumerate(groups):
            fr = []
            for (dt, s, imm) in g:
                r = self.frag()
                self.rdtr(f, r, imm, imm + 128)
                fr.append(r)
            self.lgwait(sum((vr(r, 4) for r in fr), []) + extra)
            extra = []
            if gi == 0 and p == 0 and b < 3:
                self.xpend = self.xreads(un, b + 1)
            dts = sorted(set(x[0] for x in g))
            for dt in dts:
                for qt in range(4):
                    for (d2, s, imm), r in zip(g, fr):
                        if d2 == dt:
                            self.mfma('MA0' if (b == 0 and s == 0) else 'MA', self.acc(dt, qt), r, xb + 16 * s + 4 * qt)
            if b == 3 and dts[0] % 2 == 1:
                s = dts[0] // 2
                for qt in range(4):
                    q = V_QF + 16 * s + 4 * qt
                    self.convert(2 * s, qt, q, f's{S_SC}')
                    self.convert(2 * s + 1, qt, q + 2, f's{S_SC}')
                    for k in range(2):
                        self.add(f'v_permlane32_swap_b32 v{q + k}, v{q + 2 + k}', rd=[f'v{q + k}', f'v{q + 2 + k}'],
                                 wr=[f'v{q + k}', f'v{q + 2 + k}'], kind='perm')

    def xlane(self, op, v, dst=None):
        t = self.tmp4()
        for k, sw in enumerate(('v_permlane32_swap_b32', 'v_permlane16_swap_b32')):
            self.add(f'v_mov_b32 v{t + k}, v{v}', rd=vr(v), wr=vr(t + k))
            self.add(f'{sw} v{v}, v{t + k}', rd=vr(v) + vr(t + k), wr=vr(v) + vr(t + k), kind='perm')
            self.add(f'{op} v{v}, v{v}, v{t + k}', rd=vr(v) + vr(t + k), wr=vr(v))

    def step_qk(self, un, i, f):
        first = True
        order = [(u, sh) for u in range(2) for sh in range(2)] if i else [(u, sh) for sh in range(2) for u in range(2)]
        for u, sh in order:
            fr = []
            for s in range(4 * sh, 4 * sh + 4):
                r = self.frag()
                self.rd128(f, r, V_K, u * 512 + 64 * s)
                fr.append(r)
            self.lgwait(sum((vr(r, 4) for r in fr), []))
            for qt in range(4):
                for k, r in enumerate(fr):
                    s = 4 * sh + k
                    d, q = V_S + 16 * u + 4 * qt, V_QF + 16 * s + 4 * qt
                    aft = [self.lastbr] if (first and self.lastbr) else []
                    first = False
                    if s == 0:
                        if i == 0:
                            self.mfma('MV0', d, r, q, after=aft)
                        else:
                            self.mfma('MC', d, r, q, V_NM + 4 * qt, after=aft)
                    else:
                        self.mfma('MV', d, r, q, after=aft)
        self.lastbr = None
        S = lambda u, qt, r: V_S + 16 * u + 4 * qt + r
        if i == 0:
            for qt in range(4):
                m = V_NM + 4 * qt
                v = [S(u, qt, r) for u in range(2) for r in range(4)]
                self.add(f'v_max3_f32 v{m}, v{v[0]}, v{v[1]}, v{v[2]}', rd=[f'v{x}' for x in v[:3]], wr=vr(m))
                self.add(f'v_max3_f32 v{m}, v{m}, v{v[3]}, v{v[4]}', rd=[f'v{x}' for x in v[3:5]] + vr(m), wr=vr(m))
                self.add(f'v_max3_f32 v{m}, v{m}, v{v[5]}, v{v[6]}', rd=[f'v{x}' for x in v[5:7]] + vr(m), wr=vr(m))
                self.add(f'v_max_f32 v{m}, v{m}, v{v[7]}', rd=vr(v[7]) + vr(m), wr=vr(m))
                self.xlane('v_max_f32', m)
                for r in (1, 2, 3, 0):
                    self.add(f'v_sub_f32 v{m + r}, 0, v{m}', rd=vr(m), wr=vr(m + r))
                for x in v:
                    self.add(f'AD {x},{x},{m}', rd=vr(x) + vr(m), wr=vr(x))
        for u in range(2):
            for qt in range(4):
                ts = (V_L if i == 0 else V_TS) + qt
                for r in range(4):
                    x = S(u, qt, r)
                    self.add(f'EX {x}', rd=vr(x), wr=vr(x), kind='trans')
                    if u == 0 and r == 1:
                        self.add(f'AD {ts},{x - 1},{x}', rd=vr(x - 1, 2), wr=vr(ts))
                    elif u or r:
                        self.add(f'AD {ts},{ts},{x}', rd=vr(ts) + vr(x), wr=vr(ts))
        if i == 0:
            self.cvt_p()
        else:
            t = self.tmp4()
            self.add(f'v_max3_f32 v{t}, v{V_TS}, v{V_TS + 1}, v{V_TS + 2}', rd=vr(V_TS, 3), wr=vr(t))
            self.add(f'v_max_f32 v{t}, v{t}, v{V_TS + 3}', rd=vr(t) + vr(V_TS + 3), wr=vr(t))
            self.add(f'v_cmp_lt_f32 vcc, s{S_THR}, v{t}', rd=vr(t), wr=['vcc'])
            self.kfill = f

    def cvt_p(self):
        for u in range(2):
            for qt in range(4):
                for k in range(2):
                    x = V_S + 16 * u + 4 * qt + 2 * k
                    self.add(f'CV {V_P + 4 * qt + 2 * u + k},{x}', rd=vr(x, 2), wr=vr(V_P + 4 * qt + 2 * u + k))

    def step_pv(self, un, i, f):
        first = True
        if i == 15:
            for qt in range(4):
                self.xlane('v_add_f32', V_L + qt)
                self.add(f'v_rcp_f32 v{V_TS + qt}, v{V_L + qt}', rd=vr(V_L + qt), wr=vr(V_TS + qt), kind='trans')
            if un == 0:
                self.xpend = self.xreads(1, 0)
        for g in range(4):
            fr = []
            for dt in range(4 * g, 4 * g + 4):
                r = self.frag()
                self.rdtr(f, r, 32 * dt, 512 + 32 * dt)
                fr.append(r)
            self.lgwait(sum((vr(r, 4) for r in fr), []))
            for k, r in enumerate(fr):
                for qt in range(4):
                    aft = [self.lastbr] if (first and self.lastbr) else []
                    first = False
                    last = self.mfma('MA0' if i == 0 else 'MA', self.acc(4 * g + k, qt), r, V_P + 4 * qt, after=aft)
        self.lastbr = None
        if i < 15:
            self.cvt_p()
            lab = f'{un}_{i + 1}'
            g = self.p.nm - 1
            tm = vr(V_TMP, 12)
            br = self.add(f's_cbranch_vccnz L_rs{lab}', rd=['vcc'] + vr(V_QF, 128) + tm, wr=tm, kind='br', rel=g, dl=g,
                          after=[last])
            br.post = f'L_rb{lab}:'
            self.stubs.append((lab, self.kfill.pos * SLOT))
            self.lastbr = br
            for qt in range(4):
                self.add(f'AD {V_L + qt},{V_L + qt},{V_TS + qt}', rd=vr(V_L + qt) + vr(V_TS + qt), wr=vr(V_L + qt), after=[br])
        else:
            for s in range(8):
                if un == 0:
                    self.add(f's_mov_b32 s{S_OFF2}, {s * 16384}', wr=[f's{S_OFF2}'], kind='salu')
                for qt in range(4):
                    q = (STG + 16 * (s % 4) if un == 0 else V_QF + 16 * s) + 4 * qt
                    self.convert(2 * s, qt, q, f'v{V_TS + qt}')
                    self.convert(2 * s + 1, qt, q + 2, f'v{V_TS + qt}')
                    if un == 0:
                        vo = V_Q3 if qt == 3 else V_OKV
                        st = self.add(f'buffer_store_dwordx4 v[{q}:{q + 3}], v{vo}, s[{S_WS}:{S_WS + 3}], s{S_OFF2} offen offset:{qt * 1024}',
                                      rd=vr(q, 4) + [f's{S_OFF2}'], kind='vst')
                        self.parked.append(st)
            if un == 1:
                for s in range(8):
                    self.add(f's_mov_b32 s{S_OFF2}, {s * 16384}', wr=[f's{S_OFF2}'], kind='salu')
                    for qt in range(4):
                        a = 16 * s + 4 * qt
                        vo = V_Q3 if qt == 3 else V_OKV
                        self.add(f'buffer_load_dwordx4 a[{a}:{a + 3}], v{vo}, s[{S_WS}:{S_WS + 3}], s{S_OFF2} offen offset:{qt * 1024}',
                                 rd=[f's{S_OFF2}'], wr=ar(a, 4), kind='vld', dl=self.p.nm + 40 + 4 * s)

    def step_op(self, p, h, a, f):
        if p == 0 and h == 0:
            g = self.p.nm - 1
            regs = ar(64 * a, 64)
            self.add('', rd=regs, wr=regs, kind='vmw', rel=g - 1, dl=g - 1)
        firstk = (h == 1 and a == 0)
        lastk = (h == 0 and a == 1)
        for nt in range(4):
            fr = []
            for s in range(4):
                r = self.frag()
                self.rdtr(f, r, 2 * s * 128 + 32 * nt, (2 * s + 1) * 128 + 32 * nt)
                fr.append(r)
            self.lgwait(sum((vr(r, 4) for r in fr), []))
            for qt in range(4):
                d = V_ACC + 16 * nt + 4 * qt
                for s, r in enumerate(fr):
                    z = '0' if (firstk and s == 0) else ''
                    if h == 1:
                        self.mfma('MV' + z, d, r, V_QF + 16 * (4 * a + s) + 4 * qt)
                    else:
                        self.mfma('MB' + z, d, r, 16 * (4 * a + s) + 4 * qt)
            if lastk and nt % 2 == 1:
                self.add(f's_mov_b32 s{S_OFF2}, {PART0 + (2 * p + nt // 2) * 16384}', wr=[f's{S_OFF2}'], kind='salu')
                for qt in range(4):
                    t = self.tmp4()
                    for k in range(4):
                        x = V_ACC + 16 * (nt - 1 + k // 2) + 4 * qt + 2 * (k % 2)
                        self.add(f'CV {t + k},{x}', rd=vr(x, 2), wr=vr(t + k))
                    vo = V_Q3 if qt == 3 else V_OKV
                    self.add(f'buffer_store_dwordx4 v[{t}:{t + 3}], v{vo}, s[{S_WS}:{S_WS + 3}], s{S_OFF2} offen offset:{qt * 1024}'
                             + self.o.get('pst', ''), rd=vr(t, 4) + [f's{S_OFF2}'], kind='vst')

    def build(self):
        self.build_dma()
        self.lastbr = None
        self.parked = []
        for n, st in enumerate(self.steps):
            assert self.p.nm == 64 * n
            if st[0] == 'QP':
                self.step_qp(*st[1:])
            elif st[0] == 'QK':
                self.step_qk(st[1], st[2], st[4])
            elif st[0] == 'PV':
                self.step_pv(st[1], st[2], st[4])
            else:
                self.step_op(*st[1:])
        self.bar[60].covers += self.parked
        self.finish_protocol()
        self.p.schedule(vm_space=self.o.get('vm_space', 2))
        self.p.resolve_waits()
        stats = self.p.verify()
        return stats

    def prologue(self):
        L = []
        A = L.append
        A('s_cmp_ge_u32 s2, 256\ns_cbranch_scc0 L_go\ns_endpgm\nL_go:')
        A('s_load_dwordx16 s[8:23], s[0:1], 0\ns_load_dwordx4 s[24:27], s[0:1], 64\ns_load_dwordx2 s[28:29], s[0:1], 96')
        A('v_lshrrev_b32 v20, 6, v0\nv_and_b32 v21, 63, v0')
        A('s_and_b32 s3, s2, 7\ns_lshr_b32 s4, s2, 3')
        A('v_readfirstlane_b32 s100, v20')
        A('s_lshr_b32 s5, s3, 2')
        A('s_and_b32 s3, s3, 3\ns_lshl_b32 s3, s3, 2\ns_lshr_b32 s6, s4, 3\ns_add_u32 s3, s3, s6')
        A('s_and_b32 s4, s4, 7')
        A(f'v_and_b32 v22, 15, v21\nv_mul_u32_u24 v{V_K}, {PIECE}, v22\nv_lshrrev_b32 v23, 4, v21')
        A(f'v_lshl_add_u32 v{V_K}, v23, 4, v{V_K}\nv_add_u32 v{V_K + 1}, {4 * SLOT}, v{V_K}')
        A(f'v_lshrrev_b32 v24, 2, v21\nv_mul_u32_u24 v{V_T}, {PIECE}, v24\nv_and_b32 v25, 1, v21')
        A(f'v_lshl_add_u32 v{V_T}, v25, 4, v{V_T}\nv_and_b32 v25, 2, v21\nv_lshl_add_u32 v{V_T}, v25, 2, v{V_T}')
        A(f'v_add_u32 v{V_T + 1}, {4 * SLOT}, v{V_T}')
        A(f'v_and_b32 v25, 3, v21\nv_mul_u32_u24 v{V_X}, {PIECE}, v25\nv_and_b32 v25, 3, v24')
        A(f'v_lshl_add_u32 v{V_X}, v25, 7, v{V_X}\nv_lshl_add_u32 v{V_X}, v23, 4, v{V_X}')
        A(f'v_mul_u32_u24 v25, {4 * PIECE}, v20\nv_add_u32 v{V_X}, v25, v{V_X}\nv_add_u32 v{V_X + 1}, {4 * SLOT}, v{V_X}')
        A(f'v_lshlrev_b32 v{V_OKV}, 4, v21\nv_lshl_add_u32 v{V_OKV}, v20, 12, v{V_OKV}')
        A('v_and_b32 v26, 7, v21\nv_lshlrev_b32 v26, 4, v26\nv_lshrrev_b32 v27, 3, v21')
        A('v_and_b32 v28, 1, v27\nv_lshlrev_b32 v28, 2, v28\nv_lshl_add_u32 v28, v20, 3, v28')
        A(f'v_lshl_add_u32 v29, v23, 5, v28\nv_lshl_add_u32 v{V_OW}, v29, 13, v26')
        A(f'v_and_b32 v29, 1, v23\nv_lshl_add_u32 v29, v29, 5, v28\nv_lshl_add_u32 v{V_OWH}, v29, 13, v26')
        A(f'v_lshrrev_b32 v29, 5, v21\nv_lshl_add_u32 v{V_OWH}, v29, 7, v{V_OWH}')
        A(f'v_lshlrev_b32 v29, 2, v27\nv_lshl_add_u32 v29, v20, 6, v29\nv_mul_u32_u24 v29, 896, v29\nv_add_u32 v{V_OX}, v29, v26')
        A('v_and_b32 v28, 1, v20\nv_lshlrev_b32 v28, 3, v28\nv_and_b32 v29, 2, v20\nv_lshl_add_u32 v28, v29, 1, v28')
        A(f'v_lshl_add_u32 v28, v27, 4, v28\nv_mul_u32_u24 v28, 896, v28\nv_add_u32 v{V_OWO}, v28, v26')
        A(f's_cmp_eq_u32 s100, 3\ns_cselect_b32 s7, 0x40000000, 0\nv_add_u32 v{V_Q3}, s7, v{V_OKV}')
        A(f's_mul_i32 s{S_WB}, s100, {4 * PIECE}\ns_mov_b32 s{S_THR}, {THR}\ns_mov_b32 s{S_SC}, {SCALE}')
        A('s_waitcnt lgkmcnt(0)')
        A('s_cmp_lg_u32 s5, 0')
        A(f's_cselect_b64 s[{S_WO}:{S_WO + 1}], s[26:27], s[16:17]')
        A(f's_cselect_b64 s[{S_X}:{S_X + 1}], s[18:19], s[8:9]')
        A(f's_cselect_b64 s[{S_W}:{S_W + 1}], s[24:25], s[14:15]')
        A(f's_mov_b64 s[{S_WS}:{S_WS + 1}], s[28:29]')
        A(f's_cselect_b64 s[{S_V}:{S_V + 1}], s[22:23], s[12:13]')
        A(f's_cselect_b64 s[{S_K}:{S_K + 1}], s[20:21], s[10:11]')

        def srd(base, off_code, size, step, size_reg=None):
            A(off_code)
            A(f's_add_u32 s{base}, s{base}, s7\ns_addc_u32 s{base + 1}, s{base + 1}, 0')
            for j in range(4 if step is not None else 1):
                r = base + 4 * j
                c = (step or 0) * j
                if j:
                    if c >= 0:
                        A(f's_add_u32 s{r}, s{base}, {c}\ns_addc_u32 s{r + 1}, s{base + 1}, 0')
                    else:
                        A(f's_sub_u32 s{r}, s{base}, {-c}\ns_subb_u32 s{r + 1}, s{base + 1}, 0')
                if size_reg:
                    A(f's_sub_u32 s{r + 2}, {size - c}, s7')
                else:
                    A(f's_mov_b32 s{r + 2}, {size - c}')
                A(f's_mov_b32 s{r + 3}, 0x20000')
        srd(S_X, 's_mul_i32 s7, s3, 215040', 215040, 896 - PIECE)
        srd(S_W, 's_lshl_b32 s7, s4, 10', 448 * 8192, 8192 - PIECE, size_reg=True)
        srd(S_K, 's_lshl_b32 s7, s3, 3\ns_add_u32 s7, s7, s4\ns_lshl_b32 s7, s7, 19', 524288, 1024 - PIECE)
        srd(S_V, 's_nop 0', 524288, 1024 - PIECE)
        srd(S_WO, f's_mul_i32 s7, s4, {512 * 896}', 512 * 896, 896 - PIECE)
        srd(S_WS, f's_lshl_b32 s7, s5, 4\ns_add_u32 s7, s7, s3\ns_lshl_b32 s7, s7, 3\ns_add_u32 s7, s7, s4\ns_mul_i32 s7, s7, {WSCU}',
            WSCU, None)
        return L

    def rare(self):
        L = []
        A = L.append
        for lab, kb in self.stubs:
            A(f'L_rs{lab}:\ns_mov_b32 s{S_RK}, {kb}\ns_call_b64 s[{S_RA}:{S_RA + 1}], L_rare\ns_branch L_rb{lab}')
        T = V_TMP
        A('L_rare:\ns_waitcnt lgkmcnt(0)\ns_nop 15')
        A(f'v_add_u32 v{T}, s{S_RK}, v{V_K}')
        for u in range(2):
            for sh in range(2):
                for k in range(4):
                    A(f'RD {V_P + 4 * k},{T},{u * 512 + 64 * (4 * sh + k)}')
                A('s_waitcnt lgkmcnt(0)')
                for qt in range(4):
                    for k in range(4):
                        s = 4 * sh + k
                        d, q = V_S + 16 * u + 4 * qt, V_QF + 16 * s + 4 * qt
                        A(f'MC {d},{V_P + 4 * k},{q},{V_NM + 4 * qt}' if s == 0 else f'MV {d},{V_P + 4 * k},{q}')
                A('s_nop 7')
        A('s_nop 15')
        for qt in range(4):
            v = [V_S + 16 * u + 4 * qt + r for u in range(2) for r in range(4)]
            A(f'v_max3_f32 v{T}, v{v[0]}, v{v[1]}, v{v[2]}\nv_max3_f32 v{T}, v{T}, v{v[3]}, v{v[4]}')
            A(f'v_max3_f32 v{T}, v{T}, v{v[5]}, v{v[6]}\nv_max3_f32 v{T}, v{T}, v{v[7]}, 0')
            for sw in ('v_permlane32_swap_b32', 'v_permlane16_swap_b32'):
                A(f'v_mov_b32 v{T + 1}, v{T}\ns_nop 1\n{sw} v{T}, v{T + 1}\ns_nop 1\nv_max_f32 v{T}, v{T}, v{T + 1}')
            for r in range(4):
                A(f'v_sub_f32 v{V_NM + 4 * qt + r}, v{V_NM + 4 * qt + r}, v{T}')
            for x in v:
                A(f'v_sub_f32 v{x}, v{x}, v{T}\nEX {x}')
            A(f'v_exp_f32 v{T + 1}, -v{T}')
            A(f'AD {V_TS + qt},{v[0]},{v[1]}')
            for x in v[2:]:
                A(f'AD {V_TS + qt},{V_TS + qt},{x}')
            A(f'v_mul_f32 v{V_L + qt}, v{V_L + qt}, v{T + 1}')
            for k in range(4):
                A(f'CV {V_P + 4 * qt + k},{v[2 * k]}')
            for dt in range(16):
                a = self.acc(dt, qt)
                for r in range(4):
                    A(f'AR {T + 4 + r},{a + r}')
                for r in range(4):
                    A(f'v_mul_f32 v{T + 4 + r}, v{T + 4 + r}, v{T + 1}')
                for r in range(4):
                    A(f'v_accvgpr_write_b32 a{a + r}, v{T + 4 + r}')
        A(f's_nop 3\ns_setpc_b64 s[{S_RA}:{S_RA + 1}]')
        return L


def reduce_kernel():
    L = []
    A = L.append
    A('.globl reduce_kernel\n.p2align 8\n.type reduce_kernel,@function\nreduce_kernel:')
    A('s_cmp_ge_u32 s2, 840\ns_cbranch_scc0 L_rgo\ns_endpgm\nL_rgo:')
    A('s_load_dwordx2 s[4:5], s[0:1], 96\ns_load_dwordx2 s[8:9], s[0:1], 80')
    A('v_lshrrev_b32 v1, 6, v0\nv_and_b32 v2, 63, v0\ns_nop 0\nv_readfirstlane_b32 s3, v1')
    A('s_lshl_b32 s12, s2, 2\ns_add_u32 s12, s12, s3')
    A(f's_mul_hi_u32 s13, s12, {-(-(1 << 32) // 105)}\ns_mul_i32 s14, s13, 105\ns_sub_u32 s14, s12, s14')
    A(f's_mul_hi_u32 s15, s14, {-(-(1 << 32) // 7)}\ns_mul_i32 s16, s15, 7\ns_sub_u32 s16, s14, s16')
    A(f's_mul_i32 s17, s13, {8 * WSCU}\ns_lshl_b32 s18, s16, 15\ns_add_u32 s17, s17, s18\ns_lshl_b32 s18, s15, 10')
    A(f's_add_u32 s17, s17, s18\ns_add_u32 s17, s17, {PART0}')
    A('v_lshlrev_b32 v3, 4, v2')
    A(f's_mov_b32 s6, {256 * WSCU}\ns_mov_b32 s7, 0x20000\ns_mov_b32 s10, {16 * 240 * 1792}\ns_mov_b32 s11, 0x20000')
    A('s_waitcnt lgkmcnt(0)')
    for k in range(2):
        for j in range(8):
            r = 16 + 32 * k + 4 * j
            A(f's_add_u32 s18, s17, {j * WSCU + k * 16384}\nbuffer_load_dwordx4 v[{r}:{r + 3}], v3, s[4:7], s18 offen nt')
    A('s_and_b32 s18, s13, 15\ns_mul_i32 s18, s18, 240\ns_lshl_b32 s19, s15, 4\ns_add_u32 s18, s18, s19\ns_mul_i32 s18, s18, 1792')
    A('s_lshr_b32 s19, s13, 4\ns_mul_i32 s19, s19, 896\ns_add_u32 s18, s18, s19\ns_lshl_b32 s19, s16, 7\ns_add_u32 s18, s18, s19')
    A('v_and_b32 v4, 15, v2\nv_mul_u32_u24 v4, 1792, v4\nv_lshrrev_b32 v5, 4, v2\nv_lshl_add_u32 v4, v5, 4, v4')
    for k in range(2):
        for j in range(8):
            r = 16 + 32 * k + 4 * j
            A(f's_waitcnt vmcnt({15 - 8 * k - j + k})')
            for e in range(4):
                if j == 0:
                    A(f'v_lshlrev_b32 v{8 + 2 * e}, 16, v{r + e}\nv_and_b32 v{9 + 2 * e}, 0xffff0000, v{r + e}')
                else:
                    A(f'v_lshlrev_b32 v6, 16, v{r + e}\nv_and_b32 v7, 0xffff0000, v{r + e}')
                    A(f'v_pk_add_f32 v[{8 + 2 * e}:{9 + 2 * e}], v[{8 + 2 * e}:{9 + 2 * e}], v[6:7]')
        d = 16 + 32 * k
        for e in range(4):
            A(f'v_cvt_pk_bf16_f32 v{d + e}, v{8 + 2 * e}, v{9 + 2 * e}')
        A(f's_nop 1\nv_permlane32_swap_b32 v{d}, v{d + 2}\nv_permlane32_swap_b32 v{d + 1}, v{d + 3}')
        A(f'buffer_store_dwordx4 v[{d}:{d + 3}], v4, s[8:11], s18 offen offset:{64 * k}')
    A('s_endpgm')
    return L


def kd(name, vg, sg, acc):
    return f""".amdhsa_kernel {name}
  .amdhsa_next_free_vgpr {vg}
  .amdhsa_next_free_sgpr {sg}
  .amdhsa_accum_offset {acc}
  .amdhsa_group_segment_fixed_size 0
  .amdhsa_kernarg_size 104
  .amdhsa_user_sgpr_count 2
  .amdhsa_user_sgpr_kernarg_segment_ptr 1
  .amdhsa_system_sgpr_workgroup_id_x 1
.end_amdhsa_kernel"""


def generate(opt, report=True):
    g = Gen(opt)
    stats = g.build()
    body = g.p.out
    cut = next(x.pos for x in body if x.kind == 'mfma' and x.mi == 64 * 50)
    L = [f'; @launch kernel=fused_kernel grid=(256,1,1) block=(256,1,1) lds={RING * SLOT}',
         '; @launch kernel=reduce_kernel grid=(840,1,1) block=(256,1,1) lds=0',
         '.amdgcn_target "amdgcn-amd-amdhsa--gfx950"', MACROS, '.text',
         '.globl fused_kernel\n.p2align 8\n.type fused_kernel,@function\nfused_kernel:']
    L += g.prologue()
    if opt.get('stamp'):
        L.append('s_memrealtime s[2:3]\ns_memtime s[4:5]\ns_waitcnt lgkmcnt(0)')
    for n, x in enumerate(body):
        if n == cut:
            L.append('s_branch L_cont')
            L += g.rare()
            L.append('L_cont:')
        L.append(x.text)
        if x.post:
            L.append(x.post)
    if opt.get('stamp'):
        L.append('s_waitcnt vmcnt(0)\ns_memrealtime s[6:7]\ns_memtime s[0:1]\ns_waitcnt lgkmcnt(0)')
        L.append('v_mov_b32 v20, s2\nv_mov_b32 v21, s6\nv_mov_b32 v22, s4\nv_mov_b32 v23, s0\ns_lshl_b32 s100, s100, 4\nv_mov_b32 v24, s100')
        L.append(f'buffer_store_dwordx4 v[20:23], v24, s[{S_WS}:{S_WS + 3}], 0 offen')
    L.append('s_endpgm')
    L += reduce_kernel()
    L.append('.section .rodata,"a"\n.p2align 6')
    L.append(kd('fused_kernel', 512, 102, 256))
    L.append('.p2align 6')
    L.append(kd('reduce_kernel', 80, 24, 80))
    if report:
        print('instructions', len(body), 'est cycles', g.p.tend, 'max lgkm/vm outstanding', stats, file=sys.stderr)
        mf = [x for x in body if x.kind == 'mfma']
        row = []
        for n, st in enumerate(g.steps):
            t0 = mf[64 * n].t
            t1 = mf[64 * n + 64].t if n + 1 < len(g.steps) else g.p.tend
            row.append(f'{st[0]}{st[1]}.{st[2]}:{t1 - t0 - 1024}')
        print('first mfma at', mf[0].t, 'excess per step:', ' '.join(row), file=sys.stderr)
    return '\n'.join(L) + '\n'


if __name__ == '__main__':
    opt = {}
    out = 'k.s'
    for a in sys.argv[1:]:
        if '=' in a:
            k, v = a.split('=', 1)
            try:
                v = int(v)
            except ValueError:
                pass
            opt[k] = v
        else:
            out = a
    open(out, 'w').write(generate(opt))
```
